```python
import torch

def _softmax(x, axis=-1):
    return torch.softmax(x, dim=axis)

def _gelu(x):
    return torch.nn.functional.gelu(x, approximate='tanh')

def _silu(x):
    return torch.nn.functional.silu(x)

def _sigmoid(x):
    return torch.sigmoid(x)

def _layernorm(x, axis=-1, eps=1e-05):
    m = x.mean(dim=axis, keepdim=True)
    v = x.var(dim=axis, keepdim=True, unbiased=False)
    return (x - m) / torch.sqrt(v + eps)

def _scatter_add(tgt, idx, src, axis=0):
    return tgt.clone().index_add_(axis, idx, src)

def _segment_sum(src, seg, n):
    out = torch.zeros((n,) + src.shape[1:], dtype=src.dtype)
    return out.index_add_(0, seg, src)

def _pad(x, pw):
    flat = tuple((v for pair in reversed(pw) for v in pair))
    return torch.nn.functional.pad(x, flat)
kernel_name = 'sequential_preLN__spectral_gfnet__mixer_gmlp__prompt'

def setup_inputs():

    _w = lambda a: (lambda t: t.to(torch.bfloat16) if t.is_floating_point() else t)(torch.as_tensor(a))

    def _A_setup():
        B, S, D = (1, 2048, 512)
        Df = D // 2 + 1
        return {'x': _w((lambda *s: torch.randn(*s, dtype=torch.bfloat16) * 0.05)(B, S, D)), 'w_r': _w((lambda *s: torch.randn(*s, dtype=torch.bfloat16) * 0.4)(S, Df) * 0.02), 'w_i': _w((lambda *s: torch.randn(*s, dtype=torch.bfloat16) * 0.4)(S, Df) * 0.02)}
    _A_in = _A_setup()

    def _B_setup():
        B, S, D, F = (1, 2048, 512, 1792)
        Fh = F // 2
        return {'x': _w((lambda *s: torch.randn(*s, dtype=torch.bfloat16) * 0.05)(B, S, D)), 'w_in': _w((lambda *s: torch.randn(*s, dtype=torch.bfloat16) * 0.4)(D, 2 * Fh)), 'w_sp': _w(0.01 * (lambda *s: torch.randn(*s, dtype=torch.bfloat16) * 0.4)(S, S)), 'b_sp': _w(1.0 + 0.01 * (lambda *s: torch.randn(*s, dtype=torch.bfloat16) * 0.05)(S)), 'w_out': _w((lambda *s: torch.randn(*s, dtype=torch.bfloat16) * 0.05)(Fh, D))}
    _B_in = _B_setup()
    return {'A_x': _A_in['x'], 'A_w_r': _A_in['w_r'], 'A_w_i': _A_in['w_i'], 'B_x': _B_in['x'], 'B_w_in': _B_in['w_in'], 'B_w_sp': _B_in['w_sp'], 'B_b_sp': _B_in['b_sp'], 'B_w_out': _B_in['w_out']}

def reference(A_x, A_w_r, A_w_i, B_x, B_w_in, B_w_sp, B_b_sp, B_w_out):

    def _A_ref(x, w_r, w_i):
        B, S, D = x.shape
        X = (lambda x, axes=(-2, -1): torch.fft.rfft2(x.float(), dim=axes))(x, axes=(-2, -1))
        W = w_r + 1j * w_i
        X = X * W
        y = (lambda x, s, axes=(-2, -1): torch.fft.irfft2(x, s=s, dim=axes).to(torch.bfloat16))(X, (S, D), axes=(-2, -1))
        return y

    def _B_ref(x, w_in, w_sp, b_sp, w_out):
        B, S, D = x.shape
        F = w_in.shape[-1]
        Fh = F // 2
        z = _gelu(torch.einsum('bsd,df->bsf', x, w_in))
        z1 = z[..., :Fh].clone()
        z2 = _layernorm(z[..., Fh:], axis=-1)
        g = torch.einsum('ts,bsf->btf', w_sp, z2) + b_sp[None, :, None]
        return torch.einsum('bsf,fd->bsd', z1 * g, w_out)
    x = A_x
    h = x + _A_ref(_layernorm(x, axis=-1), A_w_r, A_w_i)
    h2 = h + _B_ref(_layernorm(h, axis=-1), B_w_in, B_w_sp, B_b_sp, B_w_out)
    return h2
```

```python
import re

TRANS = ("v_exp_f32", "v_log_f32", "v_rcp_f32", "v_rsq_f32", "v_sqrt_f32", "v_sin_f32", "v_cos_f32")
RMW = ("v_fmac_f32", "v_dot2c_f32_bf16", "v_pk_fmac")
REG_RE = re.compile(r"(?<![\w.])([vas])(?:(\d+)|\[(\d+):(\d+)\])(?![\w])")


def regs_of(text):
    out = set()
    for m in REG_RE.finditer(text):
        k = m.group(1)
        if m.group(2) is not None:
            out.add((k, int(m.group(2))))
        else:
            for i in range(int(m.group(3)), int(m.group(4)) + 1):
                out.add((k, i))
    for special in ("vcc", "exec", "m0"):
        if re.search(r"(?<![\w])" + special + r"(?![\w])", text):
            out.add((special, 0))
    return out


def split_ops(s):
    ops, depth, cur = [], 0, ""
    for ch in s:
        if ch in "[(":
            depth += 1
        if ch in "])":
            depth -= 1
        if ch == "," and depth == 0:
            ops.append(cur.strip())
            cur = ""
        else:
            cur += ch
    if cur.strip():
        ops.append(cur.strip())
    return ops


class Ins:
    def __init__(self, text):
        self.text = text
        t = text.split(";")[0].strip()
        parts = t.split(None, 1)
        self.mn = mn = parts[0]
        rest = parts[1] if len(parts) > 1 else ""
        ops = split_ops(rest)
        self.kind = "other"
        self.dst, self.src, self.srcc = set(), set(), set()
        self.dpp = "dpp" in mn
        self.wide_store = False
        if mn.startswith("v_mfma"):
            self.kind = "mfma"
            self.dst = regs_of(ops[0])
            self.src = regs_of(ops[1]) | regs_of(ops[2])
            self.srcc = regs_of(ops[3].split()[0])
            self.passes = 8 if "32x32" in mn else 4
        elif mn.startswith(("buffer_", "global_")):
            self.kind = "vmem"
            lds = bool(re.search(r"\blds\b", rest))
            if "load" in mn and not lds:
                self.dst = regs_of(ops[0])
                self.src = regs_of(",".join(ops[1:]))
            else:
                self.src = regs_of(rest)
                if lds:
                    self.src.add(("m0", 0))
                    self.lds_dma = True
                if "store" in mn and ("x4" in mn or "x3" in mn):
                    self.wide_store = True
                    self.data = regs_of(ops[0] if mn.startswith("buffer") else ops[1])
        elif mn.startswith("ds_"):
            self.kind = "ds"
            if "read" in mn:
                self.dst = regs_of(ops[0])
                self.src = regs_of(",".join(ops[1:]))
            else:
                self.src = regs_of(rest)
        elif mn.startswith("v_"):
            self.kind = "valu"
            self.dst = regs_of(ops[0])
            self.src = regs_of(",".join(ops[1:]))
            base = mn.replace("_e32", "").replace("_e64", "").replace("_dpp", "")
            if base in RMW or self.dpp:
                self.src |= self.dst
            if "swap" in mn:
                self.dst |= regs_of(ops[1])
                self.src |= self.dst
            if base == "v_cndmask_b32" and len(ops) == 3:
                self.src.add(("vcc", 0))
            self.trans = base in TRANS
            self.permlane = mn.startswith("v_permlane")
            self.readlane = mn.startswith(("v_readlane", "v_readfirstlane"))
        elif mn.startswith("s_"):
            self.kind = "salu"
            if mn.startswith(("s_load", "s_memtime", "s_memrealtime")):
                self.kind = "smem"
            if mn.startswith(("s_cmp", "s_waitcnt", "s_barrier", "s_branch", "s_cbranch", "s_nop", "s_sleep",
                              "s_setprio", "s_endpgm")):
                self.src = regs_of(rest)
            else:
                self.dst = regs_of(ops[0])
                self.src = regs_of(",".join(ops[1:]))
                if "saveexec" in mn:
                    self.dst.add(("exec", 0))

    def states(self):
        if self.mn == "s_nop":
            return int(self.text.split()[1]) + 1
        return 1


def need_states(p, c):
    n = 0
    cv_reads = c.src | c.srcc
    if p.kind == "valu":
        pv = {r for r in p.dst if r[0] in "va"}
        ps = {r for r in p.dst if r[0] not in ("v", "a")}
        if c.kind == "mfma" and pv & cv_reads:
            n = max(n, 2)
        if c.kind == "valu":
            if p.trans and pv & c.src:
                n = max(n, 1)
            if (c.permlane or c.dpp) and pv & c.src:
                n = max(n, 2)
            if c.readlane and pv & c.src:
                n = max(n, 1)
            if ps & c.src:
                n = max(n, 4 if c.readlane else 2)
            if ("exec", 0) in ps and (c.dpp or c.permlane or c.readlane):
                n = max(n, 5)
        if c.kind == "vmem" and ps & c.src:
            n = max(n, 5)
        if c.kind == "salu" and ps & c.src:
            n = max(n, 2)
        if c.kind == "mfma" and ("exec", 0) in ps:
            n = max(n, 4)
    if p.kind == "mfma":
        big = p.passes == 8
        if c.kind == "mfma":
            if p.dst & c.src:
                n = max(n, 12 if big else 8)
            if p.dst & c.srcc and not (p.dst == c.srcc and p.passes == c.passes):
                n = max(n, 10 if big else 6)
            if p.dst & c.dst and not (p.dst == c.srcc):
                n = max(n, 12 if big else 8)
        elif c.kind in ("valu", "vmem", "ds"):
            if p.dst & (c.src | c.dst):
                n = max(n, 12 if big else 8)
            if c.kind == "valu" and p.srcc & c.dst:
                n = max(n, 7 if big else 3)
            if c.kind in ("vmem", "ds") and p.srcc & c.dst:
                n = max(n, 7 if big else 3)
    if p.kind == "salu" and ("m0", 0) in p.dst and c.kind == "vmem" and ("m0", 0) in c.src:
        n = max(n, 1)
    if p.kind == "vmem" and p.wide_store and (p.data & c.dst):
        n = max(n, 2)
    return n


class Asm:
    def __init__(self):
        self.out = []
        self.hist = []
        self.vm = []
        self.lg = []
        self.cond = 0
        self.ncond = 0
        self.nops = 0

    def raw(self, text):
        self.out.append(text)

    def comment(self, text):
        self.out.append("; " + text)

    def label(self, name):
        self.out.append(name + ":")

    def _push(self, ins):
        self.out.append("    " + ins.text)
        self.hist.append(ins)
        if len(self.hist) > 24:
            self.hist.pop(0)

    def _count_after(self, q, idx):
        me = q[idx]["cond"]
        return sum(1 for o in q[idx + 1:] if o["cond"] in (0, me, self.cond))

    def _wait_for(self, q, idx, name, cap):
        n = min(self._count_after(q, idx), cap)
        self._push(Ins(f"s_waitcnt {name}({n})"))
        del q[: idx + 1]

    def __call__(self, text, tag=None):
        for line in text.split("\n"):
            line = line.strip()
            if not line:
                continue
            if line.startswith(";"):
                self.out.append("    " + line)
                continue
            if line.endswith(":"):
                self.label(line[:-1])
                continue
            self._emit(Ins(line), tag)

    def _emit(self, ins, tag):
        touched = ins.src | ins.srcc | ins.dst
        for q, name, cap in ((self.vm, "vmcnt", 63), (self.lg, "lgkmcnt", 15)):
            hit = [k for k, o in enumerate(q) if o["dst"] & touched]
            if hit:
                self._wait_for(q, hit[-1], name, cap)
        if ins.mn == "s_waitcnt":
            m = re.search(r"vmcnt\((\d+)\)", ins.text)
            if m and int(m.group(1)) == 0:
                self.vm.clear()
            m = re.search(r"lgkmcnt\((\d+)\)", ins.text)
            if m and int(m.group(1)) == 0:
                self.lg.clear()
        dist, need = 0, 0
        for p in reversed(self.hist):
            need = max(need, need_states(p, ins) - dist)
            dist += p.states()
            if dist >= 12:
                break
        if need > 0:
            self.nops += need
            self._push(Ins(f"s_nop {need - 1}"))
        self._push(ins)
        if ins.kind == "vmem":
            self.vm.append({"dst": set(ins.dst), "tag": tag, "cond": self.cond})
        elif ins.kind == "ds":
            self.lg.append({"dst": set(ins.dst), "tag": tag, "cond": self.cond})

    def wait_vm(self, tag):
        hit = [k for k, o in enumerate(self.vm) if o["tag"] == tag]
        if hit:
            self._wait_for(self.vm, hit[-1], "vmcnt", 63)

    def wait_lg(self, tag=None):
        if tag is None:
            if self.lg:
                self("s_waitcnt lgkmcnt(0)")
            return
        hit = [k for k, o in enumerate(self.lg) if o["tag"] == tag]
        if hit:
            self._wait_for(self.lg, hit[-1], "lgkmcnt", 15)

    def barrier(self):
        self.wait_lg()
        self("s_barrier")

    def fence(self):
        self("s_nop 11")

    def cond_begin(self):
        self.ncond += 1
        self.cond = self.ncond

    def cond_end(self):
        self.cond = 0
        self.fence()

    def text(self):
        return "\n".join(self.out) + "\n"


def v(i, n=1):
    return f"v{i}" if n == 1 else f"v[{i}:{i + n - 1}]"


def a(i, n=1):
    return f"a{i}" if n == 1 else f"a[{i}:{i + n - 1}]"


def s(i, n=1):
    return f"s{i}" if n == 1 else f"s[{i}:{i + n - 1}]"


def f2u(x):
    import struct
    return struct.unpack("<I", struct.pack("<f", x))[0]


def lit(x):
    return f"0x{f2u(x):08x}"
```

```python
import sys
from asmlib import Asm, v, a, s, lit

NAME = "sequential_preLN__spectral_gfnet__mixer_gmlp__prompt"

WS_FLAGS = 0x1000
WS_X1F = 0x100000
WS_WT = 0x300000
WS_X2P = 0x500000
WS_WINF = 0x700000
WS_WOUTF = 0x900000
WS_ST3 = 0xA00000
WS_Z2F = 0xB00000
WS_VF = 0xF00000
WS_DBG = 0x1400000

R1, R2, R3 = 0, 65536, 131072
L_X1 = R3
L_T = R3 + 8192
L_WINJ = R3 + 16384
L_WOUTJ = R3 + 24576
L_RSTD2 = R3 + 28672
L_ST3 = R3 + 28928
L_PART = R3 + 29696
L_T2 = R3
LDS_BYTES = 163840

X, WR, WI, WIN, WSP, BSP, WOUT, OUT, WS = (s(8, 4), s(12, 4), s(16, 4), s(20, 4), s(24, 4), s(28, 4), s(32, 4),
                                           s(36, 4), s(40, 4))
sW, sNONCE, sI, sJ = "s3", "s44", "s45", "s46"
sROWB = "s47"
sWQ = "s48"
sT = [f"s{k}" for k in range(50, 70)]
sSTAMP = 72
vTID, vL, vN, vG, vL16, vNROW = "v0", "v1", "v2", "v3", "v4", "v5"
vP, vPA = "v6", "v7"
vNEGMU = 8
vB = 12
Q = 128
POLL_LIMIT = 40000


class Gen:
    def __init__(self, diag=False, stop=None):
        self.A = Asm()
        self.diag = diag
        self.stop = stop
        self.nstamp = 0
        self.nlabel = 0

    def lab(self, base):
        self.nlabel += 1
        return f"L_{base}_{self.nlabel}"

    def stamp(self):
        if not self.diag:
            return
        A = self.A
        A.wait_lg()
        A(f"s_memrealtime {s(70, 2)}")
        A("s_waitcnt lgkmcnt(0)")
        A(f"s_mov_b32 s{sSTAMP + self.nstamp}, s70")
        self.nstamp += 1

    def maybe_stop(self, name):
        if self.stop == name:
            self.A("s_waitcnt vmcnt(0) lgkmcnt(0)")
            self.A("s_branch L_finish")

    def signal(self, phase):
        A = self.A
        A("s_waitcnt vmcnt(0)")
        A.barrier()
        l = self.lab("sig")
        A(f"s_cmp_lg_u32 {sW}, 0")
        A(f"s_cbranch_scc1 {l}")
        A.cond_begin()
        A(f"s_lshl_b32 {sT[0]}, s2, 4")
        A(f"s_add_u32 {sT[0]}, {sT[0]}, {WS_FLAGS + phase * 0x1000}")
        A(f"v_mov_b32 {vP}, {sNONCE}")
        A(f"v_mov_b32 {vPA}, 0")
        A("s_mov_b64 exec, 1")
        A(f"buffer_store_dword {vP}, {vPA}, {WS}, {sT[0]} offen sc1")
        A("s_mov_b64 exec, -1")
        A.label(l)
        A.cond_end()

    def poll(self, phase):
        A = self.A
        l, d = self.lab("poll"), self.lab("pdone")
        A(f"s_mov_b32 {sT[0]}, {WS_FLAGS + phase * 0x1000}")
        A(f"s_mov_b32 {sT[1]}, {POLL_LIMIT}")
        A.label(l)
        A(f"buffer_load_dword {vP}, {vPA}, {WS}, {sT[0]} offen sc1")
        A("s_waitcnt vmcnt(0)")
        A(f"v_cmp_ne_u32 vcc, {sNONCE}, {vP}")
        A("s_cmp_eq_u64 vcc, 0")
        A(f"s_cbranch_scc1 {d}")
        A("s_sleep 2")
        A(f"s_sub_u32 {sT[1]}, {sT[1]}, 1")
        A(f"s_cmp_lg_u32 {sT[1]}, 0")
        A(f"s_cbranch_scc1 {l}")
        A.label(d)
        A.barrier()

    def poll_all(self, phase):
        self.A(f"v_lshlrev_b32 {vPA}, 4, {vTID}")
        self.poll(phase)

    def poll_cluster(self, phase):
        A = self.A
        A(f"s_and_b32 {sT[2]}, s2, 31")
        A(f"v_and_b32 {vPA}, 7, {vL}")
        A(f"v_lshlrev_b32 {vPA}, 5, {vPA}")
        A(f"v_add_u32 {vPA}, {sT[2]}, {vPA}")
        A(f"v_lshlrev_b32 {vPA}, 4, {vPA}")
        self.poll(phase)

    def poll_column(self, phase):
        A = self.A
        A(f"s_and_b32 {sT[2]}, s2, 0xe0")
        A(f"v_and_b32 {vPA}, 31, {vL}")
        A(f"v_add_u32 {vPA}, {sT[2]}, {vPA}")
        A(f"v_lshlrev_b32 {vPA}, 4, {vPA}")
        self.poll(phase)

    def dma(self, vaddr, srd, soff, ldsaddr, tag, flags="", off=0):
        A = self.A
        if isinstance(ldsaddr, tuple):
            A(f"s_add_u32 m0, {ldsaddr[0]}, {ldsaddr[1]}")
        else:
            A(f"s_mov_b32 m0, {ldsaddr}")
        o = f" offset:{off}" if off else ""
        A(f"buffer_load_dwordx4 {vaddr}, {srd}, {soff} offen{o} {flags} lds", tag=tag)

    def cmul_pk(self, re, im, c, sn, t):
        A = self.A
        A(f"v_pk_mul_f32 {v(t, 2)}, {v(im, 2)}, {v(sn, 2)}")
        A(f"v_pk_mul_f32 {v(im, 2)}, {v(im, 2)}, {v(c, 2)}")
        A(f"v_pk_fma_f32 {v(im, 2)}, {v(re, 2)}, {v(sn, 2)}, {v(im, 2)}")
        A(f"v_pk_fma_f32 {v(re, 2)}, {v(re, 2)}, {v(c, 2)}, {v(t, 2)} neg_lo:[0,0,1] neg_hi:[0,0,1]")

    def prologue(self):
        A = self.A
        A("s_cmp_ge_u32 s2, 256")
        A("s_cbranch_scc1 L_exit")
        for reg, off in ((8, 0), (12, 8), (16, 16), (20, 32), (24, 40), (28, 48), (32, 56), (36, 64), (40, 80)):
            A(f"s_load_dwordx2 {s(reg, 2)}, s[0:1], {off}")
        A(f"v_lshrrev_b32 v6, 6, {vTID}")
        A(f"v_and_b32 {vL}, 63, {vTID}")
        A(f"v_readfirstlane_b32 {sW}, v6")
        A(f"v_and_b32 {vN}, 15, {vTID}")
        A(f"v_bfe_u32 {vG}, {vTID}, 4, 2")
        A(f"v_lshlrev_b32 {vL16}, 4, {vL}")
        A(f"v_lshrrev_b32 v6, 2, {vN}")
        A(f"v_and_b32 v7, 3, {vN}")
        A(f"v_lshl_add_u32 {vNROW}, v6, 3, v7")
        sizes = {8: 2097152, 12: 1052672, 16: 1052672, 20: 1835008, 24: 8388608, 28: 4096, 32: 917504, 36: 2097152,
                 40: 268435456}
        for reg, sz in sizes.items():
            A(f"s_mov_b32 s{reg + 2}, {sz}")
            A(f"s_mov_b32 s{reg + 3}, 0x20000")
        A(f"s_and_b32 {sI}, s2, 31")
        A(f"s_lshr_b32 {sJ}, s2, 5")
        A(f"s_lshl_b32 {sWQ}, {sW}, 14")
        A(f"s_lshr_b32 {sT[0]}, {sW}, 1")
        A(f"s_lshl_b32 {sT[0]}, {sT[0]}, 5")
        A(f"s_and_b32 {sT[1]}, {sW}, 1")
        A(f"s_lshl_b32 {sT[1]}, {sT[1]}, 2")
        A(f"s_lshl_b32 {sROWB}, {sI}, 6")
        A(f"s_add_u32 {sROWB}, {sROWB}, {sT[0]}")
        A(f"s_add_u32 {sROWB}, {sROWB}, {sT[1]}")
        A("s_waitcnt lgkmcnt(0)")
        self.stamp()

    def issue_first_loads(self):
        A = self.A
        A("s_bfe_u32 s60, s2, 0x10003")
        A("s_lshr_b32 s61, s2, 6")
        A("s_bfe_u32 s62, s2, 0x20004")
        A("s_lshl_b32 s62, s62, 3")
        A(f"s_and_b32 {sT[0]}, s2, 7")
        A(f"s_or_b32 s62, s62, {sT[0]}")
        A(f"s_lshl_b32 {sT[0]}, s61, 9")
        A(f"s_lshl_b32 {sT[1]}, {sW}, 7")
        A(f"s_add_u32 {sT[0]}, {sT[0]}, {sT[1]}")
        A(f"s_add_u32 {sT[0]}, {sT[0]}, s62")
        A(f"s_lshl_b32 {sT[0]}, {sT[0]}, 10")
        A(f"v_lshlrev_b32 v116, 1, {vL}")
        for rho in range(4):
            if rho:
                A(f"s_add_u32 {sT[0]}, {sT[0]}, 32768")
            for jj in range(8):
                A(f"buffer_load_short_d16_hi v{16 + rho * 8 + jj}, v116, {X}, {sT[0]} offen offset:{128 * jj}")
        A(f"s_lshr_b32 {sT[0]}, s2, 6")
        A(f"s_lshl_b32 {sT[0]}, {sT[0]}, 4")
        A(f"s_lshl_b32 {sT[1]}, {sW}, 2")
        A(f"s_add_u32 {sT[0]}, {sT[0]}, {sT[1]}")
        A(f"s_bfe_u32 {sT[1]}, s2, 0x30003")
        A(f"s_lshl_b32 {sT[1]}, {sT[1]}, 8")
        A(f"s_add_u32 {sT[0]}, {sT[0]}, {sT[1]}")
        A(f"s_mul_i32 {sT[0]}, {sT[0]}, 514")
        A(f"s_and_b32 {sT[1]}, s2, 7")
        A(f"s_lshl_b32 {sT[1]}, {sT[1]}, 6")
        A(f"s_add_u32 {sT[0]}, {sT[0]}, {sT[1]}")
        A(f"s_add_u32 {sT[0]}, {sT[0]}, 2")
        A(f"v_lshrrev_b32 v117, 5, {vL}")
        A(f"v_mul_u32_u24 v117, 1028, v117")
        A(f"v_and_b32 v118, 31, {vL}")
        A(f"v_lshl_add_u32 v117, v118, 1, v117")
        for r in range(4):
            if r:
                A(f"s_add_u32 {sT[0]}, {sT[0]}, {64 * 514}")
            for u in range(2):
                A(f"buffer_load_ushort v{48 + u * 4 + r}, v117, {WR}, {sT[0]} offen offset:{514 * u}")
                A(f"buffer_load_short_d16_hi v{56 + u * 4 + r}, v117, {WI}, {sT[0]} offen offset:{514 * u}")
        A("v_mov_b32 v118, 0")
        A(f"buffer_load_dword v119, v118, {WS}, 0 offen sc1")
        A(f"s_getpc_b64 {s(64, 2)}")
        A.label("L_pfbase")
        A(f"v_lshlrev_b32 v118, 7, {vTID}")
        A("v_add_u32 v121, 32768, v118")
        A("v_min_u32 v118, L_code_end-L_pfbase-4, v118")
        A("v_min_u32 v121, L_code_end-L_pfbase-4, v121")
        A(f"global_load_dword v120, v118, {s(64, 2)}")
        A(f"global_load_dword v121, v121, {s(64, 2)}")

    def issue_aux_loads(self):
        A = self.A
        A(f"s_lshr_b32 {sT[0]}, s2, 5")
        A(f"s_mul_i32 {sT[0]}, {sT[0]}, 112")
        A(f"s_bfe_u32 {sT[1]}, s2, 0x20003")
        A(f"s_lshl_b32 {sT[1]}, {sT[1]}, 5")
        A(f"s_add_u32 {sT[0]}, {sT[0]}, {sT[1]}")
        A(f"s_lshl_b32 {sT[1]}, {sW}, 3")
        A(f"s_add_u32 {sT[0]}, {sT[0]}, {sT[1]}")
        A(f"s_lshl_b32 {sT[0]}, {sT[0]}, 10")
        A(f"s_and_b32 {sT[1]}, s2, 7")
        A(f"s_lshl_b32 {sT[1]}, {sT[1]}, 7")
        A(f"s_add_u32 {sT[0]}, {sT[0]}, {sT[1]}")
        A(f"v_lshrrev_b32 v122, 3, {vL}")
        A(f"v_and_b32 v123, 7, {vL}")
        A(f"v_lshlrev_b32 v123, 4, v123")
        A(f"v_lshl_add_u32 v124, v122, 10, v123")
        A(f"s_lshl_b32 {sT[2]}, {sW}, 10")
        self.dma("v124", WOUT, sT[0], (sT[2], L_WOUTJ), "aux")
        A(f"s_lshl_b32 {sT[0]}, {sW}, 7")
        A(f"s_and_b32 {sT[1]}, s2, 7")
        A(f"s_lshl_b32 {sT[1]}, {sT[1]}, 4")
        A(f"s_add_u32 {sT[0]}, {sT[0]}, {sT[1]}")
        A(f"s_mul_i32 {sT[0]}, {sT[0]}, 3584")
        A(f"s_lshr_b32 {sT[1]}, s2, 3")
        A(f"s_lshl_b32 {sT[1]}, {sT[1]}, 7")
        A(f"s_add_u32 {sT[0]}, {sT[0]}, {sT[1]}")
        A(f"v_mul_u32_u24 v124, 3584, v122")
        A(f"v_add_u32 v124, v124, v123")
        A(f"s_lshl_b32 {sT[2]}, {sW}, 11")
        self.dma("v124", WIN, sT[0], (sT[2], L_WINJ), "aux")
        A(f"s_add_u32 {sT[0]}, {sT[0]}, {8 * 3584}")
        self.dma("v124", WIN, sT[0], (sT[2], L_WINJ + 1024), "aux")
        A(f"s_lshl_b32 {sT[0]}, {sI}, 7")
        A(f"v_lshlrev_b32 v124, 1, {vNROW}")
        for m in range(4):
            A(f"buffer_load_short_d16_hi v{vB + m}, v124, {BSP}, {sT[0]} offen offset:{(32 * (m >> 1) + 4 * (m & 1)) * 2}")

    def stage_rows(self, srd, rowshift, mrow_off, koff_sgpr, lds_base, tag, own_rows):
        A = self.A
        if own_rows:
            A(f"s_lshl_b32 {sT[3]}, {sROWB}, {rowshift}")
        else:
            A(f"s_lshl_b32 {sT[3]}, {sI}, 6")
            A(f"s_add_u32 {sT[3]}, {sT[3]}, {mrow_off}")
            A(f"s_lshl_b32 {sT[3]}, {sT[3]}, {rowshift}")
            A(f"s_add_u32 {sT[3]}, {sT[3]}, {koff_sgpr}")
        for n in range(16):
            A(f"v_xor_b32 {vP}, {n * 16}, {vL16}")
            A(f"s_add_u32 {sT[4]}, {sT[3]}, {(8 * (n >> 2) + (n & 3)) << rowshift}")
            self.dma(vP, srd, sT[4], (sWQ, lds_base + n * 1024), tag)

    def stage_x(self):
        self.A.comment("x rows of this wave's 16-row tile -> R2")
        self.stage_rows(X, 10, 0, None, R2, "xblk", True)

    def stage_wsp(self, m, lds_base):
        A = self.A
        A(f"s_lshl_b32 {sT[5]}, {sW}, 10")
        self.stage_rows(WSP, 12, 32 * (m >> 1) + 4 * (m & 1), sT[5], lds_base, f"wsp{m}", False)

    def extract_wsp(self, m, lds_base, t):
        A = self.A
        A.wait_vm(f"wsp{m}")
        A(f"v_xor_b32 v{t}, {vG}, {vN}")
        A(f"v_lshlrev_b32 v{t}, 4, v{t}")
        A(f"v_lshl_add_u32 v{t}, {vN}, 10, v{t}")
        A(f"s_add_u32 {sT[0]}, {sWQ}, {lds_base}")
        A(f"v_add_u32 v{t}, {sT[0]}, v{t}")
        for k in range(1, 4):
            A(f"v_xor_b32 v{t + k}, {64 * k}, v{t}")
        for qq in range(16):
            A(f"ds_read_b128 {a((m * 16 + qq) * 4, 4)}, v{t + (qq & 3)} offset:{(qq >> 2) * 256}")
        A.wait_lg()

    def consts_p1(self):
        A = self.A
        A(f"v_cvt_f32_u32 v84, {vN}")
        A(f"v_cvt_f32_u32 v85, {vG}")
        A("s_lshl_b32 s63, s60, 4")
        A("s_add_u32 s63, s63, 1")
        A(f"v_add_u32 v86, s63, {vN}")
        A("v_cvt_f32_u32 v86, v86")
        A(f"v_mul_f32 v87, {lit(1 / 32)}, v86")
        A("v_mul_f32 v88, v85, v87")
        for e in range(8):
            A(f"v_fmamk_f32 v{90 + e}, v87, {lit(4.0 * e)}, v88")
        for e in range(8):
            A(f"v_cos_f32 v{98 + e}, v{90 + e}")
            A(f"v_sin_f32 v{90 + e}, v{90 + e}")
        for d in range(4):
            A(f"v_cvt_pk_bf16_f32 v{64 + d}, v{98 + 2 * d}, v{99 + 2 * d}")
            A(f"v_cvt_pk_bf16_f32 v{68 + d}, -v{90 + 2 * d}, -v{91 + 2 * d}")
        A(f"v_mul_f32 v87, {lit(-1 / 512)}, v86")
        A("v_mul_f32 v89, 4.0, v85")
        A("v_mul_f32 v88, v89, v87")
        for r in range(4):
            A(f"v_fmamk_f32 v{90 + r}, v87, {lit(float(r))}, v88")
        for r in range(4):
            A(f"v_cos_f32 v{76 + r}, v{90 + r}")
            A(f"v_sin_f32 v{80 + r}, v{90 + r}")
        A(f"v_lshrrev_b32 v87, 1, {vN}")
        A("v_cvt_f32_u32 v87, v87")
        A(f"v_mul_f32 v87, {lit(1 / 16)}, v87")
        A(f"v_and_b32 v88, 1, {vN}")
        A("v_cvt_f32_u32 v88, v88")
        A(f"v_mul_f32 v88, {lit(0.25)}, v88")
        A("v_fmac_f32 v88, v89, v87")
        for r in range(4):
            A(f"v_fmamk_f32 v{90 + r}, v87, {lit(float(r))}, v88")
        for r in range(4):
            A(f"v_cos_f32 v{94 + r}, v{90 + r}")
            A(f"v_sin_f32 v{90 + r}, v{90 + r}")
        for r in range(4):
            A(f"v_cvt_pk_bf16_f32 v{72 + r}, v{94 + r}, v{90 + r}")

    def dft_frags(self, kreg, base, step, adst):
        A = self.A
        for r in range(4):
            A(f"v_fmamk_f32 v{92 + r}, {kreg}, {lit(float(step + r))}, {base}")
        for r in range(4):
            A(f"v_cos_f32 v{96 + r}, v{92 + r}")
            A(f"v_sin_f32 v{92 + r}, v{92 + r}")
        for r in range(4):
            A(f"v_cvt_pk_bf16_f32 v{100 + r}, v{96 + r}, v{92 + r}")
            A(f"v_cvt_pk_bf16_f32 v{104 + r}, -v{92 + r}, v{96 + r}")
        for r in range(8):
            A(f"v_accvgpr_write_b32 a{adst + r}, v{100 + r}")

    def twid(self, kreg, base, step, qc, scale):
        A = self.A
        for r in range(4):
            A(f"v_fmamk_f32 v{92 + r}, {kreg}, {lit(float(step + r))}, {base}")
        for r in range(4):
            A(f"v_cos_f32 v{96 + r}, v{92 + r}")
            A(f"v_sin_f32 v{92 + r}, v{92 + r}")
        for r in range(4):
            A(f"v_mul_f32 v{Q + 4 * (qc + (r >> 1)) + (r & 1)}, {scale}, v{96 + r}")
            A(f"v_mul_f32 v{Q + 4 * (qc + 2 + (r >> 1)) + (r & 1)}, {scale}, v{92 + r}")

    def consts_p2(self):
        A = self.A
        A(f"s_lshl_b32 {sT[0]}, {sW}, 4")
        A(f"v_add_u32 v86, {sT[0]}, {vN}")
        A("v_cvt_f32_u32 v86, v86")
        A(f"v_mul_f32 v87, {lit(1 / 64)}, v86")
        A("v_mul_f32 v88, v89, v87")
        for q in range(4):
            self.dft_frags("v87", "v88", 16 * q, 128 + 8 * q)
        for kbt in range(2):
            A(f"v_add_f32 v87, {lit(16.0 * kbt)}, v84")
            A(f"v_mul_f32 v87, {lit(1 / 32)}, v87")
            A("v_mul_f32 v88, v89, v87")
            for t in range(2):
                self.dft_frags("v87", "v88", 16 * t, 160 + 8 * (kbt * 2 + t))
        A(f"v_mul_f32 v87, {lit(-1 / 2048)}, v86")
        A("v_mul_f32 v88, v89, v87")
        for t in range(2):
            self.twid("v87", "v88", 16 * t, 4 * t, lit(2.0 ** -4))
        A(f"s_mov_b32 {sT[1]}, {lit(2.0 ** -13)}")
        A("s_cmp_eq_u32 s2, 255")
        A(f"s_cselect_b32 {sT[1]}, {lit(2.0 ** -14)}, {sT[1]}")
        A(f"v_cvt_f32_u32 v90, {sT[0]}")
        A("v_add_f32 v90, v90, v89")
        for t in range(2):
            A(f"v_add_f32 v87, {lit(16.0 * t)}, v84")
            A(f"v_mul_f32 v87, {lit(-1 / 2048)}, v87")
            A("v_mul_f32 v88, v90, v87")
            self.twid("v87", "v88", 0, 8 + 4 * t, sT[1])

    def consts_table(self):
        A = self.A
        A(f"v_lshrrev_b32 v86, 1, {vN}")
        A("v_cvt_f32_u32 v86, v86")
        A(f"v_and_b32 v90, 1, {vN}")
        A("v_cvt_f32_u32 v87, v90")
        A(f"s_lshl_b32 {sT[0]}, {sW}, 12")
        A(f"v_add_u32 v91, {sT[0]}, {vL16}")
        A(f"s_mov_b32 {sT[1]}, {lit(0.25)}")
        A(f"s_cmp_lt_u32 {sW}, 2")
        A(f"s_cselect_b32 {sT[1]}, {lit(-0.25)}, {sT[1]}")
        A(f"s_and_b32 {sT[2]}, {sW}, 1")
        A(f"s_cmp_eq_u32 {sT[2]}, 1")
        A(f"s_cselect_b32 {sT[3]}, 0, {sT[1]}")
        A(f"v_mul_f32 v108, {sT[1]}, v87")
        A(f"v_mul_f32 v109, {sT[3]}, v87")
        A(f"s_lshr_b32 {sT[4]}, {sW}, 1")
        A(f"v_cmp_eq_u32 vcc, {sT[4]}, v90")
        A(f"s_cmp_eq_u32 {sT[2]}, 1")
        A(f"s_cselect_b64 {s(66, 2)}, 0, -1")
        A(f"s_or_b64 vcc, vcc, {s(66, 2)}")
        A("v_cndmask_b32 v110, 0, -1, vcc")
        A(f"s_lshl_b32 {sT[4]}, {sW}, 2")
        A(f"v_lshl_add_u32 v111, {vG}, 6, {sT[4]}")
        A("v_cvt_f32_u32 v111, v111")
        for kk in range(4):
            for e in range(4):
                A(f"v_add_f32 v{112 + e}, {lit(float(kk + 1 + 16 * e))}, v111")
                A(f"v_mul_f32 v{112 + e}, {lit(1 / 512)}, v{112 + e}")
            ph = "v109" if kk == 3 else "v108"
            for mu in range(4):
                A(f"v_add_f32 v88, {lit(8.0 * mu)}, v86")
                for e in range(4):
                    A(f"v_fma_f32 v{92 + e}, v88, v{112 + e}, {ph}")
                for e in range(4):
                    A(f"v_cos_f32 v{96 + e}, v{92 + e}")
                    A(f"v_sin_f32 v{92 + e}, v{92 + e}")
                d = 100 + 4 * (mu & 1)
                A(f"v_cvt_pk_bf16_f32 v{d}, v96, v97")
                A(f"v_cvt_pk_bf16_f32 v{d + 1}, v98, v99")
                A(f"v_cvt_pk_bf16_f32 v{d + 2}, -v92, -v93")
                A(f"v_cvt_pk_bf16_f32 v{d + 3}, -v94, -v95")
                if kk == 3:
                    for e in range(4):
                        A(f"v_and_b32 v{d + e}, v110, v{d + e}")
                A(f"ds_write_b128 v91, {v(d, 4)} offset:{R1 + mu * 16384 + kk * 1024}")

    def consts_mb(self, dst):
        A = self.A
        A(f"v_cvt_f32_u32 v84, {vN}")
        A(f"v_mul_f32 v84, {lit(1 / 16)}, v84")
        for e in range(2):
            A(f"v_lshl_add_u32 v85, {vG}, 1, {1 + e}")
            A("v_cvt_f32_u32 v85, v85")
            A("v_mul_f32 v85, v85, v84")
            A("v_cos_f32 v86, v85")
            A("v_sin_f32 v87, v85")
            if e == 1:
                A(f"v_cmp_eq_u32 vcc, 3, {vG}")
                A("v_cndmask_b32 v87, v87, -1.0, vcc")
            A(f"v_cvt_pk_bf16_f32 v{dst + e}, v86, -v87")
        A(f"v_lshlrev_b32 v85, 2, {vG}")
        A(f"v_sub_u32 v85, {vN}, v85")
        A("v_mov_b32 v86, 0x3f80")
        A("v_mov_b32 v87, 0x3f800000")
        for e in range(2):
            A(f"v_cmp_eq_u32 vcc, {2 * e}, v85")
            A(f"v_cndmask_b32 v{dst + 2 + e}, 0, v86, vcc")
            A(f"v_cmp_eq_u32 vcc, {2 * e + 1}, v85")
            A(f"v_cndmask_b32 v{dst + 2 + e}, v{dst + 2 + e}, v87, vcc")

    def p1(self):
        A = self.A
        for k in range(8):
            A(f"v_or_b32 v{48 + k}, v{48 + k}, v{56 + k}")
        A(f"v_readfirstlane_b32 {sNONCE}, v119")
        A(f"s_and_b32 {sT[0]}, s2, 7")
        A(f"s_lshl_b32 {sT[0]}, {sT[0]}, 18")
        A(f"s_lshr_b32 {sT[1]}, s2, 5")
        A(f"s_lshl_b32 {sT[1]}, {sT[1]}, 10")
        A(f"s_add_u32 {sT[0]}, {sT[0]}, {sT[1]}")
        A(f"s_bfe_u32 {sT[1]}, s2, 0x20003")
        A(f"s_lshl_b32 {sT[1]}, {sT[1]}, 8")
        A(f"s_add_u32 {sT[0]}, {sT[0]}, {sT[1]}")
        A(f"s_lshl_b32 {sT[1]}, {sW}, 6")
        A(f"s_add_u32 {sT[0]}, {sT[0]}, {sT[1]}")
        A(f"s_add_u32 {sT[0]}, {sT[0]}, {WS_WT}")
        A(f"s_add_u32 {sNONCE}, {sNONCE}, 1")
        A(f"v_and_b32 v117, 31, {vL}")
        A(f"v_lshlrev_b32 v117, 13, v117")
        A(f"v_and_b32 v118, 32, {vL}")
        A("v_add_u32 v117, v117, v118")
        A(f"buffer_store_dwordx4 v[48:51], v117, {WS}, {sT[0]} offen sc1")
        A(f"buffer_store_dwordx4 v[52:55], v117, {WS}, {sT[0]} offen offset:16 sc1")
        for rho in range(4):
            b = 16 + 8 * rho
            A(f"v_pk_add_f32 {v(84 + 2 * rho, 2)}, {v(b, 2)}, {v(b + 2, 2)}")
            A(f"v_pk_mul_f32 {v(92 + 2 * rho, 2)}, {v(b, 2)}, {v(b, 2)}")
        for k in range(1, 4):
            for rho in range(4):
                b = 16 + 8 * rho
                if k > 1:
                    A(f"v_pk_add_f32 {v(84 + 2 * rho, 2)}, {v(84 + 2 * rho, 2)}, {v(b + 2 * k, 2)}")
                A(f"v_pk_fma_f32 {v(92 + 2 * rho, 2)}, {v(b + 2 * k, 2)}, {v(b + 2 * k, 2)}, {v(92 + 2 * rho, 2)}")
        for rho in range(4):
            A(f"v_add_f32 v{84 + 2 * rho}, v{84 + 2 * rho}, v{85 + 2 * rho}")
            A(f"v_add_f32 v{92 + 2 * rho}, v{92 + 2 * rho}, v{93 + 2 * rho}")
        for b in (84, 92):
            A(f"v_permlane32_swap_b32 v{b}, v{b + 4}")
            A(f"v_permlane32_swap_b32 v{b + 2}, v{b + 6}")
        for b in (84, 92):
            A(f"v_add_f32 v{b}, v{b}, v{b + 4}")
            A(f"v_add_f32 v{b + 2}, v{b + 2}, v{b + 6}")
        for b in (84, 92):
            A(f"v_permlane16_swap_b32 v{b}, v{b + 2}")
        for b in (84, 92):
            A(f"v_add_f32 v{b}, v{b}, v{b + 2}")
        for sh in (8, 4, 2, 1):
            for b in (84, 92):
                A(f"v_add_f32_dpp v{b}, v{b}, v{b} row_ror:{sh} row_mask:0xf bank_mask:0xf")
        A(f"v_mul_f32 v84, {lit(1 / 512)}, v84")
        A(f"v_mul_f32 v85, v84, v84")
        A(f"v_fma_f32 v92, v92, {self.kconst(1 / 512, 6)}, -v85")
        A("v_max_f32 v92, 0, v92")
        A(f"v_add_f32 v92, {lit(1e-5)}, v92")
        A("v_rsq_f32 v92, v92")
        A(f"v_mul_f32 v92, {lit(0.25)}, v92")
        A("v_mul_f32 v84, v84, v92")
        for rho in range(4):
            A(f"v_readlane_b32 s{64 + 2 * rho}, v92, {16 * rho}")
            A(f"v_readlane_b32 {sT[rho]}, v84, {16 * rho}")
        for rho in range(4):
            A(f"v_mov_b32 v{84 + 2 * rho}, {sT[rho]}")
        for rho in range(4):
            b = 16 + 8 * rho
            for k in range(4):
                A(f"v_pk_fma_f32 {v(b + 2 * k, 2)}, {v(b + 2 * k, 2)}, {s(64 + 2 * rho, 2)}, {v(84 + 2 * rho, 2)} "
                  f"op_sel_hi:[1,0,0] neg_lo:[0,0,1] neg_hi:[0,0,1]")
        for rho in range(4):
            b = 16 + 8 * rho
            for k in range(4):
                A(f"v_cvt_pk_bf16_f32 v{48 + 4 * rho + k}, v{b + 2 * k}, v{b + 2 * k + 1}")
        for rho in range(4):
            A(f"v_mfma_f32_16x16x32_bf16 {v(16 + 8 * rho, 4)}, {v(48 + 4 * rho, 4)}, v[64:67], 0")
            A(f"v_mfma_f32_16x16x32_bf16 {v(20 + 8 * rho, 4)}, {v(48 + 4 * rho, 4)}, v[68:71], 0")
        for rho in range(4):
            b = 16 + 8 * rho
            self.cmul_pk(b, b + 4, 76, 80, 84)
            self.cmul_pk(b + 2, b + 6, 78, 82, 86)
            for r in range(4):
                A(f"v_cvt_pk_bf16_f32 v{48 + 4 * rho + r}, v{b + r}, v{b + 4 + r}")
        for rho in range(4):
            A(f"v_mfma_f32_16x16x32_bf16 {v(16 + 4 * rho, 4)}, v[72:75], {v(48 + 4 * rho, 4)}, 0")
        A(f"v_bfe_u32 v84, {vN}, 1, 2")
        A(f"v_xor_b32 v84, {sW}, v84")
        A(f"v_lshlrev_b32 v84, 4, v84")
        A(f"v_lshl_add_u32 v84, {vN}, 6, v84")
        A(f"v_lshl_add_u32 v84, {vG}, 11, v84")
        A(f"v_add_u32 v84, {L_X1}, v84")
        for kk in range(2):
            for rho in range(4):
                A(f"v_cvt_pk_bf16_f32 v{40 + 4 * kk + rho}, v{16 + 4 * rho + 2 * kk}, v{17 + 4 * rho + 2 * kk}")
            A(f"ds_write_b128 v84, {v(40 + 4 * kk, 4)} offset:{1024 * kk}")
        A(f"v_bfe_u32 v85, {vTID}, 3, 2")
        A(f"v_xor_b32 v85, v85, {vTID}")
        A(f"v_and_b32 v85, 3, v85")
        A(f"v_and_b32 v86, 0xfc, {vTID}")
        A(f"v_or_b32 v85, v85, v86")
        A(f"v_lshlrev_b32 v85, 4, v85")
        A(f"v_add_u32 v85, {L_X1}, v85")
        A(f"s_bfe_u32 {sT[0]}, s62, 0x20002")
        A(f"s_sub_u32 {sT[0]}, 0, {sT[0]}")
        A(f"s_and_b32 {sT[0]}, {sT[0]}, 3")
        A(f"v_xor_b32 v86, {sT[0]}, {vTID}")
        A(f"v_and_b32 v86, 3, v86")
        A(f"v_lshlrev_b32 v86, 4, v86")
        A(f"v_bfe_u32 v87, {vTID}, 2, 4")
        A(f"v_lshl_add_u32 v86, v87, 13, v86")
        A(f"s_lshl_b32 {sT[0]}, {sW}, 18")
        A(f"s_lshl_b32 {sT[1]}, s60, 17")
        A(f"s_add_u32 {sT[0]}, {sT[0]}, {sT[1]}")
        A(f"s_lshr_b32 {sT[1]}, s62, 4")
        A(f"s_lshl_b32 {sT[1]}, {sT[1]}, 12")
        A(f"s_add_u32 {sT[0]}, {sT[0]}, {sT[1]}")
        A(f"s_lshl_b32 {sT[1]}, s61, 10")
        A(f"s_add_u32 {sT[0]}, {sT[0]}, {sT[1]}")
        A(f"s_and_b32 {sT[1]}, s62, 15")
        A(f"s_lshl_b32 {sT[1]}, {sT[1]}, 6")
        A(f"s_add_u32 {sT[0]}, {sT[0]}, {sT[1]}")
        A(f"s_add_u32 {sT[0]}, {sT[0]}, {WS_X1F}")
        A(f"s_add_u32 {sT[1]}, {sT[0]}, {1 << 20}")
        A.barrier()
        A("ds_read_b128 v[16:19], v85")
        A("ds_read_b128 v[20:23], v85 offset:4096")
        A(f"buffer_store_dwordx4 v[16:19], v86, {WS}, {sT[0]} offen sc1")
        A(f"buffer_store_dwordx4 v[20:23], v86, {WS}, {sT[1]} offen sc1")

    def kconst(self, val, k):
        self.A(f"s_mov_b32 {sT[k]}, {lit(val)}")
        return sT[k]

    def prep_x(self):
        A = self.A
        A.wait_vm("xblk")
        A(f"v_lshlrev_b32 v84, 4, {vN}")
        A(f"v_lshl_add_u32 v84, {vN}, 10, v84")
        A(f"v_lshl_add_u32 v84, {vG}, 8, v84")
        A(f"s_add_u32 {sT[0]}, {sWQ}, {R2}")
        A(f"v_add_u32 v84, {sT[0]}, v84")
        for q in range(16):
            A(f"v_xor_b32 v{85 + (q & 3)}, {16 * q}, v84")
            A(f"ds_read_b128 {v(16 + 4 * q, 4)}, v{85 + (q & 3)}")
        A("v_mov_b32 v88, 0xbb00bb00")
        for k in range(1, 4):
            A(f"v_mov_b32 v{88 + k}, v88")
        for q in range(16):
            c = "0" if q == 0 else v(vNEGMU, 4)
            A(f"v_mfma_f32_16x16x32_bf16 {v(vNEGMU, 4)}, v[88:91], {v(16 + 4 * q, 4)}, {c}")
        A(f"s_mov_b32 {sT[0]}, 0x05040100")
        A(f"s_mov_b32 {sT[1]}, 0x07060302")
        for mu in range(4):
            for e in range(8):
                for h in range(2):
                    lo = 16 + 4 * (4 * (2 * h) + mu) + (e >> 1)
                    hi = 16 + 4 * (4 * (2 * h + 1) + mu) + (e >> 1)
                    A(f"v_perm_b32 v{Q + 4 * (8 * mu + e) + 2 + h}, v{hi}, v{lo}, {sT[e & 1]}")

    def aux_jobs(self):
        A = self.A
        A.wait_vm("aux")
        A.barrier()
        A(f"v_bfe_u32 v84, {vL}, 2, 2")
        A(f"v_and_b32 v85, 3, {vL}")
        A(f"v_lshl_add_u32 v86, {vG}, 2, v84")
        A(f"v_lshlrev_b32 v86, 7, v86")
        A(f"v_lshl_add_u32 v86, v85, 4, v86")
        A(f"s_lshr_b32 {sT[0]}, {sW}, 1")
        A(f"s_lshl_b32 {sT[0]}, {sT[0]}, 6")
        A(f"s_and_b32 {sT[1]}, {sW}, 1")
        A(f"s_lshl_b32 {sT[1]}, {sT[1]}, 3")
        A(f"s_add_u32 {sT[0]}, {sT[0]}, {sT[1]}")
        A(f"s_add_u32 {sT[0]}, {sT[0]}, {L_WOUTJ}")
        A(f"v_add_u32 v86, {sT[0]}, v86")
        A("ds_read_b64_tr_b16 v[16:17], v86")
        A("ds_read_b64_tr_b16 v[18:19], v86 offset:2048")
        A(f"v_lshlrev_b32 v87, 11, {vG}")
        A(f"v_lshl_add_u32 v87, v84, 7, v87")
        A(f"v_lshl_add_u32 v87, v85, 3, v87")
        A(f"s_lshl_b32 {sT[0]}, {sW}, 5")
        A(f"s_add_u32 {sT[0]}, {sT[0]}, {L_WINJ}")
        A(f"v_add_u32 v87, {sT[0]}, v87")
        for k in range(4):
            A(f"ds_read_b64_tr_b16 {v(20 + 2 * k, 2)}, v87 offset:{512 * k}")
        A(f"s_bfe_u32 {sT[0]}, s2, 0x20003")
        A(f"s_cmp_eq_u32 {sT[0]}, 3")
        A(f"s_cselect_b32 {sT[0]}, 0, -1")
        A(f"v_and_b32 v18, {sT[0]}, v18")
        A(f"v_and_b32 v19, {sT[0]}, v19")
        A(f"s_and_b32 {sT[0]}, s2, 7")
        A(f"s_lshl_b32 {sT[0]}, {sT[0]}, 17")
        A(f"s_lshr_b32 {sT[1]}, s2, 3")
        A(f"s_lshl_b32 {sT[1]}, {sT[1]}, 12")
        A(f"s_add_u32 {sT[0]}, {sT[0]}, {sT[1]}")
        A(f"s_lshl_b32 {sT[1]}, {sW}, 10")
        A(f"s_add_u32 {sT[0]}, {sT[0]}, {sT[1]}")
        A(f"s_add_u32 {sT[0]}, {sT[0]}, {WS_WOUTF}")
        A(f"buffer_store_dwordx4 v[16:19], {vL16}, {WS}, {sT[0]} offen sc1")
        l = self.lab("nowin")
        A("s_cmp_ge_u32 s2, 224")
        A(f"s_cbranch_scc1 {l}")
        A.cond_begin()
        A(f"s_lshr_b32 {sT[0]}, s2, 3")
        A(f"s_lshl_b32 {sT[0]}, {sT[0]}, 16")
        A(f"s_add_u32 {sT[0]}, {sT[0]}, {sWQ}")
        A(f"s_and_b32 {sT[1]}, s2, 7")
        A(f"s_lshl_b32 {sT[1]}, {sT[1]}, 11")
        A(f"s_add_u32 {sT[0]}, {sT[0]}, {sT[1]}")
        A(f"s_add_u32 {sT[0]}, {sT[0]}, {WS_WINF}")
        A(f"buffer_store_dwordx4 v[20:23], {vL16}, {WS}, {sT[0]} offen sc1")
        A(f"buffer_store_dwordx4 v[24:27], {vL16}, {WS}, {sT[0]} offen offset:1024 sc1")
        A.label(l)
        A.wait_lg()
        A.cond_end()

    def p2(self):
        A = self.A
        A(f"s_lshl_b32 {sT[0]}, s2, 13")
        A(f"s_lshl_b32 {sT[1]}, {sW}, 11")
        A(f"s_add_u32 {sT[0]}, {sT[0]}, {sT[1]}")
        A(f"s_add_u32 {sT[2]}, {sT[0]}, {WS_X1F}")
        A(f"s_add_u32 m0, {sT[1]}, {L_X1}")
        A(f"buffer_load_dwordx4 {vL16}, {WS}, {sT[2]} offen sc1 lds", tag="x1")
        A(f"buffer_load_dwordx4 {vL16}, {WS}, {sT[2]} offen offset:1024 sc1 lds", tag="x1")
        A(f"s_add_u32 {sT[2]}, {sT[0]}, {WS_WT}")
        A(f"buffer_load_dwordx4 v[48:51], {vL16}, {WS}, {sT[2]} offen sc1")
        A(f"buffer_load_dwordx4 v[52:55], {vL16}, {WS}, {sT[2]} offen offset:1024 sc1")
        A(f"v_lshrrev_b32 v56, 2, {vN}")
        A(f"v_sub_u32 v56, 0, v56")
        A(f"v_and_b32 v56, 3, v56")
        A(f"v_xor_b32 v56, v56, {vG}")
        A(f"v_lshlrev_b32 v56, 4, v56")
        A(f"v_lshl_add_u32 v57, {vN}, 6, v56")
        A(f"v_add_u32 v57, {L_X1}, v57")
        A(f"v_lshl_add_u32 v58, {vNROW}, 6, v56")
        A(f"v_add_u32 v58, {L_T}, v58")
        A(f"v_lshrrev_b32 v59, 3, {vN}")
        A(f"v_sub_u32 v59, 0, v59")
        A(f"v_and_b32 v59, 3, v59")
        A(f"v_xor_b32 v59, v59, {vG}")
        A(f"v_lshlrev_b32 v59, 4, v59")
        A(f"v_lshl_add_u32 v59, {vN}, 6, v59")
        A(f"s_add_u32 {sT[1]}, {sT[1]}, {L_T}")
        A(f"v_add_u32 v59, {sT[1]}, v59")
        A(f"v_xor_b32 v60, 32, v59")
        A.wait_vm("x1")
        A.barrier()
        for t in range(2):
            for q in range(4):
                A(f"ds_read_b128 {v(16 + 4 * (4 * t + q), 4)}, v57 offset:{4096 * t + 1024 * q}")
        for t in range(2):
            for q in range(4):
                for p in range(2):
                    d = v(64 + 8 * t + 4 * p, 4)
                    A(f"v_mfma_f32_16x16x32_bf16 {d}, {v(16 + 4 * (4 * t + q), 4)}, {a(128 + 8 * q + 4 * p, 4)}, "
                      f"{'0' if q == 0 else d}")
        for t in range(2):
            b = 64 + 8 * t
            for h in range(2):
                self.cmul_pk(b + 2 * h, b + 4 + 2 * h, Q + 4 * (4 * t + h), Q + 4 * (4 * t + 2 + h), 62)
            for r in range(4):
                A(f"v_cvt_pk_bf16_f32 v{80 + 4 * t + r}, v{b + r}, v{b + 4 + r}")
        for kbt in range(2):
            for t in range(2):
                for p in range(2):
                    d = v(88 + 8 * kbt + 4 * p, 4)
                    A(f"v_mfma_f32_16x16x32_bf16 {d}, {a(160 + 8 * (2 * kbt + t) + 4 * p, 4)}, {v(80 + 4 * t, 4)}, "
                      f"{'0' if t == 0 else d}")
        for k in range(8):
            A(f"v_lshlrev_b32 v{104 + k}, 16, v{48 + k}")
            A(f"v_and_b32 v{112 + k}, 0xffff0000, v{48 + k}")
        for kbt in range(2):
            b = 88 + 8 * kbt
            for h in range(2):
                self.cmul_pk(b + 2 * h, b + 4 + 2 * h, 104 + 4 * kbt + 2 * h, 112 + 4 * kbt + 2 * h, 62)
            for r in range(4):
                A(f"v_cvt_pk_bf16_f32 v{80 + 4 * kbt + r}, v{b + 4 + r}, v{b + r}")
        for t in range(2):
            for kbt in range(2):
                for p in range(2):
                    d = v(64 + 8 * t + 4 * p, 4)
                    A(f"v_mfma_f32_16x16x32_bf16 {d}, {v(80 + 4 * kbt, 4)}, {a(160 + 8 * (2 * t + kbt) + 4 * p, 4)}, "
                      f"{'0' if kbt == 0 else d}")
        for t in range(2):
            b = 64 + 8 * t
            for h in range(2):
                self.cmul_pk(b + 2 * h, b + 4 + 2 * h, Q + 4 * (8 + 4 * t + h), Q + 4 * (8 + 4 * t + 2 + h), 62)
            for r in range(4):
                A(f"v_cvt_pk_bf16_f32 v{88 + 4 * t + r}, v{b + r}, v{b + 4 + r}")
            A(f"ds_write_b128 v{59 + t}, {v(88 + 4 * t, 4)} offset:{1024 * t}")
        A(f"v_lshrrev_b32 v61, 1, {vN}")
        A(f"v_lshlrev_b32 v61, 16, v61")
        A(f"v_and_b32 v62, 1, {vN}")
        A(f"v_lshl_add_u32 v61, v62, 6, v61")
        A(f"v_lshl_add_u32 v61, {vG}, 4, v61")
        A(f"s_lshl_b32 {sT[0]}, {sW}, 19")
        A(f"s_lshl_b32 {sT[1]}, s2, 8")
        A(f"s_add_u32 {sT[0]}, {sT[0]}, {sT[1]}")
        A(f"s_add_u32 {sT[0]}, {sT[0]}, {WS_X2P}")
        A.barrier()
        for tau in range(2):
            for q in range(4):
                A(f"ds_read_b128 {v(16 + 4 * (4 * tau + q), 4)}, v58 offset:{256 * tau + 2048 * q}")
        for tau in range(2):
            for q in range(4):
                for p in range(2):
                    d = v(64 + 8 * tau + 4 * p, 4)
                    A(f"v_mfma_f32_16x16x32_bf16 {d}, {v(16 + 4 * (4 * tau + q), 4)}, {a(128 + 8 * q + 4 * p, 4)}, "
                      f"{'0' if q == 0 else d}")
        for pl in range(2):
            for tau in range(2):
                b = 64 + 8 * tau + 4 * (1 - pl)
                A(f"v_cvt_pk_bf16_f32 v{80 + 4 * pl + 2 * tau}, v{b}, v{b + 1}")
                A(f"v_cvt_pk_bf16_f32 v{81 + 4 * pl + 2 * tau}, v{b + 2}, v{b + 3}")
            A(f"buffer_store_dwordx4 {v(80 + 4 * pl, 4)}, v61, {WS}, {sT[0]} offen offset:{128 * pl} sc1")

    def win_base(self):
        A = self.A
        A(f"s_mul_i32 {sT[0]}, {sJ}, 7")
        A(f"s_add_u32 s60, {sT[0]}, {sW}")
        A("s_add_u32 s60, s60, 56")
        A("s_add_u32 s61, s60, 4")
        A(f"s_add_u32 {sT[1]}, {sT[0]}, 6")
        A(f"s_cmp_eq_u32 {sW}, 3")
        A(f"s_cselect_b32 s61, {sT[1]}, s61")
        A(f"s_lshl_b32 {sT[1]}, {sW}, 1")
        A(f"s_add_u32 s62, {sT[0]}, {sT[1]}")
        for r in (60, 61, 62):
            A(f"s_lshl_b32 s{r}, s{r}, 14")
            A(f"s_add_u32 s{r}, s{r}, {WS_WINF}")
        A("s_add_u32 s63, s62, 16384")

    def win_load(self, dst, base, q):
        A = self.A
        if q & 3 == 0 and q:
            A(f"s_add_u32 {base}, {base}, 4096")
        A(f"buffer_load_dwordx4 {dst}, {vL16}, {WS}, {base} offen offset:{1024 * (q & 3)} sc1")

    def p3a(self):
        A = self.A
        MB, TF, ACC, HF = 112, 16, 48, 80
        for k in range(4):
            A(f"v_xor_b32 v{84 + k}, {64 * k}, {vL16}")
        A(f"s_lshl_b32 {sT[0]}, {sI}, 16")
        A(f"s_add_u32 {sT[0]}, {sT[0]}, {sWQ}")
        A(f"s_add_u32 {sT[0]}, {sT[0]}, {WS_X2P}")
        for k in range(4):
            if k:
                A(f"s_add_u32 {sT[0]}, {sT[0]}, 4096")
            A(f"s_add_u32 m0, {sWQ}, {R2 + 4096 * k}")
            for x in range(4):
                A(f"buffer_load_dwordx4 v{84 + k}, {WS}, {sT[0]} offen offset:{1024 * x} sc1 lds", tag="x2")
        self.win_base()
        for q in range(8):
            self.win_load(a(192 + 8 * q, 4), "s60", q)
            self.win_load(a(196 + 8 * q, 4), "s61", q)
        self.consts_mb(MB)
        A(f"v_bfe_u32 v84, {vL}, 2, 2")
        A(f"s_lshr_b32 {sT[0]}, {sW}, 1")
        A(f"v_xor_b32 v85, {sT[0]}, v84")
        A(f"v_lshlrev_b32 v85, 6, v85")
        A(f"v_lshrrev_b32 v86, 2, {vL}")
        A(f"v_lshl_add_u32 v85, v86, 12, v85")
        A(f"v_and_b32 v86, 3, {vL}")
        A(f"v_lshl_add_u32 v85, v86, 4, v85")
        A(f"s_and_b32 {sT[0]}, {sW}, 1")
        A(f"s_lshl_b32 {sT[0]}, {sT[0]}, 3")
        A(f"s_add_u32 {sT[0]}, {sT[0]}, {R2}")
        A(f"v_add_u32 v85, {sT[0]}, v85")
        A(f"v_xor_b32 v86, 128, v85")
        A(f"s_add_u32 {sT[0]}, {sWQ}, {R2}")
        A(f"v_add_u32 v116, {sT[0]}, {vL16}")
        A.wait_vm("x2")
        A.barrier()
        order = []
        for pi in range(8):
            order += [pi, 14 - pi if pi < 7 else 15]
        for kap in order:
            A(f"ds_read_b64_tr_b16 {a(128 + 4 * kap, 2)}, v85 offset:{256 * kap}")
            A(f"ds_read_b64_tr_b16 {a(130 + 4 * kap, 2)}, v86 offset:{256 * kap}")
        seq = [(mu, kap) for mu in range(4) for kap in order]

        def tread(idx):
            if idx < len(seq):
                mu, kap = seq[idx]
                A(f"ds_read_b128 {v(TF + 4 * (idx & 7), 4)}, {vL16} offset:{R1 + mu * 16384 + kap * 1024}")

        for idx in range(7):
            tread(idx)
        A.barrier()

        def post_ops(mu):
            ops = []
            qb = Q + 32 * mu
            for h in range(2):
                for e in range(2):
                    r = [qb + 4 * (2 * x + h) + e for x in range(4)]
                    ops.append(f"v_permlane32_swap_b32 v{r[0]}, v{r[2]}")
                    ops.append(f"v_permlane32_swap_b32 v{r[1]}, v{r[3]}")
            for h in range(2):
                for e in range(2):
                    r = [qb + 4 * (2 * x + h) + e for x in range(4)]
                    ops.append(f"v_permlane16_swap_b32 v{r[0]}, v{r[1]}")
                    ops.append(f"v_permlane16_swap_b32 v{r[2]}, v{r[3]}")
            yb = 96 if mu == 0 else Q + 32 * (mu - 1)
            ybs = [yb + 4 * k for k in range(8)]
            if mu == 0:
                ybs = [96, 100, 104, 108, 120, 124, 88, 92]
            for nu in range(8):
                ops.append(f"v_mfma_f32_16x16x32_bf16 {v(ybs[nu], 4)}, {v(MB, 4)}, {v(qb + 4 * nu, 4)}, {v(vNEGMU, 4)}")
            return ops, ybs

        def out_ops(mu, ybs, hf):
            ops = []
            for r in range(4):
                for d in range(4):
                    ops.append(f"v_cvt_pk_bf16_f32 v{hf[r] + d}, v{ybs[2 * d] + r}, v{ybs[2 * d + 1] + r}")
                ops.append(f"ds_write_b128 v116, {v(hf[r], 4)} offset:{1024 * (4 * r + mu)}")
                c = "0" if (mu == 0 and r == 0) else "v[80:83]"
                ops.append(f"v_mfma_f32_16x16x32_bf16 v[80:83], {v(hf[r], 4)}, {v(hf[r], 4)}, {c}")
            return ops

        pending = []
        for mu in range(5):
            if mu < 4:
                for k, kap in enumerate(order):
                    idx = 16 * mu + k
                    d = v(ACC + 4 * (k >> 1), 4)
                    A(f"v_mfma_f32_16x16x32_bf16 {d}, {v(TF + 4 * (idx & 7), 4)}, {a(128 + 4 * kap, 4)}, "
                      f"{'0' if k & 1 == 0 else d}")
                    tread(idx + 7)
                    if k >= 5 and k & 1:
                        pi = (k - 5) >> 1
                        self.cvtA(mu, pi, ACC)
                    take = 3 if len(pending) > 3 * (15 - k) else 2
                    for _ in range(min(take, len(pending))):
                        A(pending.pop(0))
                while pending:
                    A(pending.pop(0))
                self.cvtA(mu, 6, ACC)
                self.cvtA(mu, 7, ACC)
                ops, ybs = post_ops(mu)
                hf = [Q + 32 * mu + 4 * r for r in range(4)]
                pending = ops + out_ops(mu, ybs, hf)
            else:
                while pending:
                    A(pending.pop(0))
        A(f"v_and_b32 v84, 3, {vN}")
        A("v_cmp_eq_u32 vcc, 1, v84")
        A("v_cndmask_b32 v80, v80, v81, vcc")
        A("v_cmp_eq_u32 vcc, 2, v84")
        A("v_cndmask_b32 v80, v80, v82, vcc")
        A("v_cmp_eq_u32 vcc, 3, v84")
        A("v_cndmask_b32 v80, v80, v83, vcc")
        A(f"v_mov_b32 v81, {lit(1e-5)}")
        A(f"v_fmac_f32 v81, {lit(1 / 512)}, v80")
        A("v_rsq_f32 v81, v81")
        A(f"s_lshl_b32 {sT[0]}, {sW}, 6")
        A(f"s_add_u32 {sT[0]}, {sT[0]}, {L_RSTD2}")
        A(f"v_lshl_add_u32 v82, {vN}, 2, {sT[0]}")
        A(f"v_lshrrev_b32 v84, 2, {vN}")
        A(f"v_cmp_eq_u32 vcc, v84, {vG}")
        A("s_nop 1")
        A("s_mov_b64 exec, vcc")
        A("ds_write_b32 v82, v81")
        A("s_mov_b64 exec, -1")

    def cvtA(self, mu, pi, ACC):
        for h in range(2):
            dst = Q + 32 * mu + 4 * (2 * (pi >> 1) + h) + (pi & 1)
            self.A(f"v_cvt_pk_bf16_f32 v{dst}, v{ACC + 4 * pi + 2 * h}, v{ACC + 4 * pi + 2 * h + 1}")

    def gelu(self, base, nreg, rs, t):
        A = self.A
        A(f"s_mov_b32 s64, {lit(-2.3022081986 * 0.044715)}")
        A(f"v_mov_b32 v{t + 8}, {lit(-2.3022081986)}")
        for k in range(0, nreg, 4):
            m = (k >> 2) & 3
            rsel = "op_sel_hi:[1,0]" if (rs + m) & 1 == 0 else "op_sel:[0,1] op_sel_hi:[1,1]"
            rp = v((rs + m) & ~1, 2)
            for h in (0, 2):
                A(f"v_pk_mul_f32 {v(base + k + h, 2)}, {v(base + k + h, 2)}, {rp} {rsel}")
            for h in (0, 2):
                A(f"v_pk_mul_f32 {v(t + h, 2)}, {v(base + k + h, 2)}, {v(base + k + h, 2)}")
            for h in (0, 2):
                A(f"v_pk_fma_f32 {v(t + h, 2)}, {v(t + h, 2)}, s[64:65], {v(t + 8, 2)} op_sel_hi:[1,0,0]")
            for h in (0, 2):
                A(f"v_pk_mul_f32 {v(t + h, 2)}, {v(t + h, 2)}, {v(base + k + h, 2)}")
            for h in range(4):
                A(f"v_exp_f32 v{t + h}, v{t + h}")
            for h in (0, 2):
                A(f"v_pk_add_f32 {v(t + h, 2)}, {v(t + h, 2)}, 1.0 op_sel_hi:[1,0]")
            for h in range(4):
                A(f"v_rcp_f32 v{t + h}, v{t + h}")
            for h in (0, 2):
                A(f"v_pk_mul_f32 {v(base + k + h, 2)}, {v(base + k + h, 2)}, {v(t + h, 2)}")

    def gemm1_phase(self, acc, wreg, prefetch):
        A = self.A
        HB = 80

        def hread(q):
            if q < 16:
                for m in range(4):
                    A(f"ds_read_b128 {v(HB + 16 * (q & 1) + 4 * m, 4)}, v117 offset:{16384 * m + 1024 * q}")

        hread(0)
        for q in range(16):
            hread(q + 1)
            for sl in range(2):
                for m in range(4):
                    d = v(acc + 16 * sl + 4 * m, 4)
                    A(f"v_mfma_f32_16x16x32_bf16 {d}, {wreg(q, sl)}, {v(HB + 16 * (q & 1) + 4 * m, 4)}, "
                      f"{'0' if q == 0 else d}")
            prefetch(q)

    def gemm1(self):
        A = self.A
        RS, HR = 112, 120
        for q in range(8, 16):
            self.win_load(v(Q + 8 * (q - 8), 4), "s60", q)
            self.win_load(v(Q + 4 + 8 * (q - 8), 4), "s61", q)
        A(f"v_add_u32 v117, {R2}, {vL16}")
        A(f"v_lshlrev_b32 v118, 2, {vN}")
        A(f"v_add_u32 v118, {L_RSTD2}, v118")
        A(f"s_and_b32 {sT[0]}, {sJ}, 1")
        A(f"s_lshl_b32 {sT[0]}, {sT[0]}, 13")
        A(f"s_lshr_b32 {sT[1]}, {sJ}, 1")
        A(f"s_lshl_b32 {sT[1]}, {sT[1]}, 8")
        A(f"s_add_u32 {sT[0]}, {sT[0]}, {sT[1]}")
        A(f"s_add_u32 {sT[0]}, {sT[0]}, {sWQ}")
        A(f"s_add_u32 {sT[0]}, {sT[0]}, {R2}")
        A(f"v_lshlrev_b32 v119, 10, {vG}")
        A(f"v_lshl_add_u32 v119, {vN}, 4, v119")
        A(f"v_add_u32 v119, {sT[0]}, v119")
        A.barrier()
        self.stamp()
        for m in range(4):
            A(f"ds_read_b32 v{RS + m}, v118 offset:{64 * m}")
        A(f"ds_read_b128 {v(HR, 4)}, v119")
        A(f"ds_read_b128 {v(HR + 4, 4)}, v119 offset:4096")

        def w1(q, sl):
            return a(192 + 8 * q + 4 * sl, 4) if q < 8 else v(Q + 8 * (q - 8) + 4 * sl, 4)

        def pf1(q):
            if q < 8:
                self.win_load(v(Q + 64 + 8 * q, 4), "s62", q)
                self.win_load(v(Q + 68 + 8 * q, 4), "s63", q)
            else:
                self.win_load(a(192 + 8 * (q - 8), 4), "s62", q)
                self.win_load(a(196 + 8 * (q - 8), 4), "s63", q)

        self.gemm1_phase(16, w1, pf1)
        l = self.lab("w3mv")
        A(f"s_cmp_lg_u32 {sW}, 3")
        A(f"s_cbranch_scc1 {l}")
        A.cond_begin()
        A.fence()
        for k in range(16):
            A(f"v_mov_b32 v{48 + k}, v{32 + k}")
            A(f"v_mov_b32 v{64 + k}, 0")
            A(f"v_mov_b32 v{32 + k}, 0")
        A.label(l)
        A.cond_end()
        self.gelu(16, 32, RS, 80)
        for m in range(4):
            b = 16 + 4 * m
            A(f"v_pk_add_f32 {v(80 + 2 * m, 2)}, {v(b, 2)}, {v(b + 2, 2)}")
            A(f"v_pk_mul_f32 {v(88 + 2 * m, 2)}, {v(b, 2)}, {v(b, 2)}")
        for o in (2, 16, 18):
            for m in range(4):
                b = 16 + 4 * m + o
                if o > 2:
                    A(f"v_pk_add_f32 {v(80 + 2 * m, 2)}, {v(80 + 2 * m, 2)}, {v(b, 2)}")
                A(f"v_pk_fma_f32 {v(88 + 2 * m, 2)}, {v(b, 2)}, {v(b, 2)}, {v(88 + 2 * m, 2)}")
        for m in range(4):
            A(f"v_add_f32 v{80 + 2 * m}, v{80 + 2 * m}, v{81 + 2 * m}")
            A(f"v_add_f32 v{88 + 2 * m}, v{88 + 2 * m}, v{89 + 2 * m}")
        for b in (80, 88):
            A(f"v_permlane32_swap_b32 v{b}, v{b + 4}")
            A(f"v_permlane32_swap_b32 v{b + 2}, v{b + 6}")
        for b in (80, 88):
            A(f"v_add_f32 v{b}, v{b}, v{b + 4}")
            A(f"v_add_f32 v{b + 2}, v{b + 2}, v{b + 6}")
        for b in (80, 88):
            A(f"v_permlane16_swap_b32 v{b}, v{b + 2}")
        A("v_add_f32 v80, v80, v82")
        A("v_add_f32 v81, v88, v90")
        A(f"s_lshl_b32 {sT[0]}, {sW}, 9")
        A(f"s_add_u32 {sT[0]}, {sT[0]}, {L_PART}")
        A(f"v_lshl_add_u32 v82, {vL}, 3, {sT[0]}")
        A("ds_write_b64 v82, v[80:81]")
        A.barrier()
        l3, lj = self.lab("w3"), self.lab("join")
        A(f"s_cmp_eq_u32 {sW}, 3")
        A(f"s_cbranch_scc1 {l3}")
        A.cond_begin()

        def w2(q, sl):
            return v(Q + 64 + 8 * q + 4 * sl, 4) if q < 8 else a(192 + 8 * (q - 8) + 4 * sl, 4)

        self.gemm1_phase(48, w2, lambda q: None)
        A(f"s_branch {lj}")
        A.cond_end()
        A.label(l3)
        A.cond_begin()
        A(f"v_lshlrev_b32 v82, 3, {vL}")
        A(f"v_add_u32 v83, {L_PART}, v82")
        for k in range(4):
            A(f"ds_read_b64 {v(84 + 2 * k, 2)}, v83 offset:{512 * k}")
        A("v_pk_add_f32 v[84:85], v[84:85], v[86:87]")
        A("v_pk_add_f32 v[88:89], v[88:89], v[90:91]")
        A("v_pk_add_f32 v[84:85], v[84:85], v[88:89]")
        A(f"s_lshl_b32 {sT[2]}, {sI}, 12")
        A(f"s_add_u32 {sT[2]}, {sT[2]}, {WS_ST3}")
        A(f"s_lshl_b32 {sT[3]}, {sJ}, 9")
        A(f"s_add_u32 {sT[3]}, {sT[3]}, {sT[2]}")
        A(f"buffer_store_dwordx2 v[84:85], v82, {WS}, {sT[3]} offen sc1")
        A("s_waitcnt vmcnt(0)")
        A(f"s_lshl_b32 {sT[0]}, s2, 4")
        A(f"s_add_u32 {sT[0]}, {sT[0]}, {WS_FLAGS + 2 * 0x1000}")
        A(f"v_mov_b32 {vP}, {sNONCE}")
        A(f"v_mov_b32 {vPA}, 0")
        A("s_mov_b64 exec, 1")
        A(f"buffer_store_dword {vP}, {vPA}, {WS}, {sT[0]} offen sc1")
        A("s_mov_b64 exec, -1")
        A(f"s_and_b32 {sT[4]}, s2, 31")
        A(f"v_and_b32 {vPA}, 7, {vL}")
        A(f"v_lshlrev_b32 {vPA}, 5, {vPA}")
        A(f"v_add_u32 {vPA}, {sT[4]}, {vPA}")
        A(f"v_lshlrev_b32 {vPA}, 4, {vPA}")
        lp, ld = self.lab("poll"), self.lab("pdone")
        A(f"s_mov_b32 {sT[0]}, {WS_FLAGS + 2 * 0x1000}")
        A(f"s_mov_b32 {sT[1]}, {POLL_LIMIT}")
        A("s_sleep 12")
        A.label(lp)
        A(f"buffer_load_dword {vP}, {vPA}, {WS}, {sT[0]} offen sc1")
        A("s_waitcnt vmcnt(0)")
        A(f"v_cmp_ne_u32 vcc, {sNONCE}, {vP}")
        A("s_cmp_eq_u64 vcc, 0")
        A(f"s_cbranch_scc1 {ld}")
        A("s_sleep 2")
        A(f"s_sub_u32 {sT[1]}, {sT[1]}, 1")
        A(f"s_cmp_lg_u32 {sT[1]}, 0")
        A(f"s_cbranch_scc1 {lp}")
        A.label(ld)
        for k in range(8):
            A(f"buffer_load_dwordx2 {v(84 + 2 * k, 2)}, v82, {WS}, {sT[2]} offen offset:{512 * k} sc1")
        for k in range(4):
            A(f"v_pk_add_f32 {v(84 + 4 * k, 2)}, {v(84 + 4 * k, 2)}, {v(86 + 4 * k, 2)}")
        A("v_pk_add_f32 v[84:85], v[84:85], v[88:89]")
        A("v_pk_add_f32 v[92:93], v[92:93], v[96:97]")
        A("v_pk_add_f32 v[84:85], v[84:85], v[92:93]")
        A(f"v_mul_f32 v84, {lit(1 / 896)}, v84")
        A(f"v_mul_f32 v86, v84, v84")
        A(f"v_fma_f32 v85, v85, {self.kconst(1 / 896, 6)}, -v86")
        A(f"v_max_f32 v85, 0, v85")
        A(f"v_add_f32 v85, {lit(1e-5)}, v85")
        A("v_rsq_f32 v86, v85")
        A("v_mul_f32 v87, v84, v86")
        A(f"v_add_u32 v83, {L_ST3}, v82")
        A("ds_write_b64 v83, v[86:87]")
        A.wait_lg()
        A.label(lj)
        A.cond_end()
        self.gelu(48, 32, RS, 80)
        A.barrier()
        self.stamp()

    def z2_out(self):
        A = self.A
        A(f"v_lshlrev_b32 v80, 3, {vN}")
        A(f"v_add_u32 v80, {L_ST3}, v80")
        for m in range(4):
            A(f"ds_read_b64 {v(84 + 2 * m, 2)}, v80 offset:{128 * m}")
        A(f"v_lshrrev_b32 v81, 2, {vN}")
        A(f"v_xor_b32 v81, v81, {vG}")
        A(f"v_lshlrev_b32 v81, 3, v81")
        A(f"v_lshl_add_u32 v81, {vNROW}, 5, v81")
        A(f"s_lshl_b32 {sT[0]}, {sW}, 12")
        A(f"s_add_u32 {sT[0]}, {sT[0]}, {L_T2}")
        A(f"v_add_u32 v81, {sT[0]}, v81")
        A(f"v_bfe_u32 v82, {vL}, 2, 2")
        A(f"v_lshl_add_u32 v82, {vG}, 3, v82")
        A(f"v_and_b32 v83, 3, {vL}")
        A(f"v_xor_b32 v83, v83, {vG}")
        A(f"v_lshlrev_b32 v83, 3, v83")
        A(f"v_lshl_add_u32 v82, v82, 5, v83")
        A(f"v_add_u32 v82, {sT[0]}, v82")
        for sl in range(2):
            for m in range(4):
                b = 16 + 16 * sl + 4 * m
                st = v(84 + 2 * m, 2)
                for h in (0, 2):
                    A(f"v_pk_fma_f32 {v(b + h, 2)}, {v(b + h, 2)}, {st}, {st} op_sel:[0,0,1] op_sel_hi:[1,0,1] "
                      f"neg_lo:[0,0,1] neg_hi:[0,0,1]")
                A(f"v_cvt_pk_bf16_f32 v{b}, v{b}, v{b + 1}")
                A(f"v_cvt_pk_bf16_f32 v{b + 1}, v{b + 2}, v{b + 3}")
                A(f"ds_write_b64 v81, {v(b, 2)} offset:{2048 * sl + (32 * (m >> 1) + 4 * (m & 1)) * 32}")
        A(f"s_mul_i32 {sT[0]}, {sJ}, 7")
        A(f"s_add_u32 {sT[0]}, {sT[0]}, {sW}")
        A(f"s_lshl_b32 {sT[0]}, {sT[0]}, 16")
        A(f"s_lshl_b32 {sT[1]}, {sI}, 11")
        A(f"s_add_u32 {sT[0]}, {sT[0]}, {sT[1]}")
        A(f"s_add_u32 {sT[0]}, {sT[0]}, {WS_Z2F}")
        A(f"s_add_u32 {sT[1]}, {sT[0]}, {4 << 16}")
        A.wait_lg()
        for sl in range(2):
            for qq in range(2):
                for half in range(2):
                    A(f"ds_read_b64_tr_b16 {v(16 + 8 * sl + 4 * qq + 2 * half, 2)}, v82 "
                      f"offset:{2048 * sl + 1024 * qq + 128 * half}")
        for qq in range(2):
            A(f"buffer_store_dwordx4 {v(16 + 4 * qq, 4)}, {vL16}, {WS}, {sT[0]} offen offset:{1024 * qq} sc1")
        A.wait_lg()
        l = self.lab("z2b")
        A(f"s_cmp_eq_u32 {sW}, 3")
        A(f"s_cbranch_scc1 {l}")
        A.cond_begin()
        for qq in range(2):
            A(f"buffer_store_dwordx4 {v(24 + 4 * qq, 4)}, {vL16}, {WS}, {sT[1]} offen offset:{1024 * qq} sc1")
        A.label(l)
        A.cond_end()

    def p4_prep(self):
        A = self.A
        for lam in range(7):
            if lam < 5:
                A(f"s_lshl_b32 {sT[0]}, {sW}, 1")
                A(f"s_add_u32 {sT[0]}, {sT[0]}, {2 + lam}")
                A(f"s_cmp_eq_u32 {sW}, 3")
                A(f"s_cselect_b32 {sT[0]}, {lam + 7}, {sT[0]}")
                A(f"s_cmp_ge_u32 {sT[0]}, 7")
                A(f"s_cselect_b32 {sT[1]}, 7, 0")
                A(f"s_sub_u32 {sT[0]}, {sT[0]}, {sT[1]}")
            elif lam == 5:
                A(f"s_lshl_b32 {sT[0]}, {sW}, 1")
                A(f"s_add_u32 {sT[0]}, {sT[0]}, 1")
                A(f"s_min_u32 {sT[0]}, {sT[0]}, 5")
            else:
                A(f"s_lshl_b32 {sT[0]}, {sW}, 1")
            if lam < 6:
                A(f"s_lshr_b32 {sT[1]}, {sT[0]}, 1")
                A(f"s_sub_u32 {sT[1]}, {sW}, {sT[1]}")
                A(f"s_sub_u32 {sT[1]}, {sT[1]}, 1")
                A(f"s_and_b32 {sT[1]}, {sT[1]}, 3")
                A(f"s_lshl_b32 {sT[1]}, {sT[1]}, 12")
                A(f"s_mul_i32 s69, {sT[0]}, 12288")
                A(f"s_add_u32 {sT[1]}, {sT[1]}, s69")
                if lam == 5:
                    A(f"s_cmp_eq_u32 {sW}, 3")
                    A(f"s_cselect_b32 {sT[1]}, {sT[1]}, {8 * 12288}")
                A(f"v_add_u32 v{112 + lam}, {sT[1]}, {vL16}")
            A(f"s_mul_i32 {sT[1]}, {sJ}, 7")
            A(f"s_add_u32 {sT[0]}, {sT[0]}, {sT[1]}")
            A(f"s_lshl_b32 {sT[0]}, {sT[0]}, 16")
            A(f"s_add_u32 {sT[0]}, {sT[0]}, {sWQ}")
            A(f"s_add_u32 s{60 + lam}, {sT[0]}, {WS_Z2F}")
        A(f"s_mul_i32 {sT[0]}, {sW}, 24576")
        A(f"v_add_u32 v118, {sT[0]}, {vL16}")
        A(f"s_cmp_eq_u32 {sW}, 3")
        A(f"s_cselect_b32 s67, 0, -1")
        for m in range(4):
            for r in range(4):
                A(f"v_mov_b32 v{self.acc4(6, m) + r}, v{vB + m}")
                A(f"v_and_b32 v{self.acc4(5, m) + r}, s67, v{vB + m}")
        HR = 120
        for u in range(4):
            for r in range(4):
                src = HR + 2 * u + (r >> 1)
                if r & 1:
                    A(f"v_and_b32 v{96 + 4 * u + r}, 0xffff0000, v{src}")
                else:
                    A(f"v_lshlrev_b32 v{96 + 4 * u + r}, 16, v{src}")
        for k in range(16):
            A(f"v_sub_f32 v{96 + k}, v{96 + k}, v{vNEGMU}")

    @staticmethod
    def acc4(lam, m):
        return Q + 16 + 16 * lam + 4 * m

    def p4(self):
        A = self.A
        ring = [16 + 4 * k for k in range(8)] + [80 + 4 * k for k in range(4)] + [120, 124] + [Q + 4 * k for k in range(4)]
        passes = [(0, 1, 2), (3, 4, 5), (6,)]
        seq = [(lam, qq) for ps in passes for qq in range(16) for lam in ps]
        depth = len(ring) - 1

        def load(idx):
            if idx < len(seq):
                lam, qq = seq[idx]
                if qq & 3 == 0 and qq:
                    A(f"s_add_u32 s{60 + lam}, s{60 + lam}, 4096")
                A(f"buffer_load_dwordx4 {v(ring[idx % len(ring)], 4)}, {vL16}, {WS}, s{60 + lam} offen "
                  f"offset:{1024 * (qq & 3)} sc1")

        for idx in range(depth):
            load(idx)
        writes = []
        for idx, (lam, qq) in enumerate(seq):
            if qq == 0 and lam in (3, 6):
                prev = passes[0] if lam == 3 else passes[1]
                writes = [(pl, m) for pl in prev for m in range(4)]
            for m in range(4):
                d = v(self.acc4(lam, m), 4)
                c = "0" if (qq == 0 and lam < 5) else d
                A(f"v_mfma_f32_16x16x32_bf16 {d}, {v(ring[idx % len(ring)], 4)}, {a((m * 16 + qq) * 4, 4)}, {c}")
                if m == 0:
                    load(idx + depth)
            if writes and qq >= (1 if lam == 3 else 2):
                pl, m = writes.pop(0)
                A(f"ds_write_b128 v{112 + pl}, {v(self.acc4(pl, m), 4)} offset:{1024 * m}")
        assert not writes
        A.barrier()
        self.stamp()
        A(f"s_lshl_b32 {sT[0]}, {sI}, 17")
        A(f"s_lshl_b32 {sT[1]}, {sJ}, 12")
        A(f"s_add_u32 {sT[0]}, {sT[0]}, {sT[1]}")
        A(f"s_lshl_b32 {sT[1]}, {sW}, 10")
        A(f"s_add_u32 {sT[0]}, {sT[0]}, {sT[1]}")
        A(f"s_add_u32 {sT[0]}, {sT[0]}, {WS_VF}")
        tmp = Q + 16
        for m in range(4):
            for t in range(2):
                for src in range(3):
                    A(f"ds_read_b128 {v(tmp + 4 * ((6 * m + 3 * t + src) % 12), 4)}, v118 "
                      f"offset:{12288 * t + 4096 * src + 1024 * m}")
            if m == 0:
                continue
            self.gate(m - 1, tmp)
        self.gate(3, tmp)

    def gate(self, m, tmp):
        A = self.A
        for t in range(2):
            lam = 6 - t
            d = self.acc4(lam, m)
            for src in range(3):
                x = tmp + 4 * ((6 * m + 3 * t + src) % 12)
                for h in (0, 2):
                    A(f"v_pk_add_f32 {v(d + h, 2)}, {v(d + h, 2)}, {v(x + h, 2)}")
            z = 48 + 16 * t + 4 * m
            for h in (0, 2):
                A(f"v_pk_mul_f32 {v(d + h, 2)}, {v(d + h, 2)}, {v(z + h, 2)}")
            A(f"v_cvt_pk_bf16_f32 v{16 + 4 * m + 2 * t}, v{d}, v{d + 1}")
            A(f"v_cvt_pk_bf16_f32 v{17 + 4 * m + 2 * t}, v{d + 2}, v{d + 3}")
        A(f"v_and_b32 v{18 + 4 * m}, s67, v{18 + 4 * m}")
        A(f"v_and_b32 v{19 + 4 * m}, s67, v{19 + 4 * m}")
        if m:
            A(f"s_add_u32 {sT[0]}, {sT[0]}, 32768")
        A(f"buffer_store_dwordx4 {v(16 + 4 * m, 4)}, {vL16}, {WS}, {sT[0]} offen sc1")

    def wout_dma(self):
        A = self.A
        A(f"s_lshl_b32 {sT[0]}, {sJ}, 17")
        A(f"s_lshl_b32 {sT[1]}, {sW}, 12")
        A(f"s_add_u32 {sT[0]}, {sT[0]}, {sT[1]}")
        A(f"s_add_u32 {sT[0]}, {sT[0]}, {WS_WOUTF}")
        for k in range(8):
            if k:
                A(f"s_add_u32 {sT[0]}, {sT[0]}, 16384")
            A(f"s_add_u32 m0, {sT[1]}, {16384 * k}")
            for x in range(4):
                A(f"buffer_load_dwordx4 {vL16}, {WS}, {sT[0]} offen offset:{1024 * x} sc1 lds", tag="wout")

    def p5(self):
        A = self.A
        A(f"s_lshl_b32 {sT[0]}, {sI}, 17")
        A(f"s_lshl_b32 {sT[1]}, {sW}, 15")
        A(f"s_add_u32 {sT[0]}, {sT[0]}, {sT[1]}")
        A(f"s_add_u32 {sT[0]}, {sT[0]}, {WS_VF}")
        for st in range(32):
            if st & 3 == 0 and st:
                A(f"s_add_u32 {sT[0]}, {sT[0]}, 4096")
            A(f"buffer_load_dwordx4 {v(Q + 4 * st, 4)}, {vL16}, {WS}, {sT[0]} offen offset:{1024 * (st & 3)} sc1")
        A(f"v_add_u32 v112, 65536, {vL16}")

        def wread(st):
            if st < 32:
                for u in range(4):
                    base = vL16 if st < 16 else "v112"
                    A(f"ds_read_b128 {v(16 + 16 * (st % 3) + 4 * u, 4)}, {base} offset:{4096 * (st & 15) + 1024 * u}")

        wread(0)
        wread(1)
        A(f"v_add_u32 v113, {sROWB}, {vNROW}")
        A(f"v_lshlrev_b32 v113, 10, v113")
        A(f"v_lshl_add_u32 v113, {vG}, 4, v113")
        A(f"s_lshl_b32 {sT[1]}, {sJ}, 7")
        for st in range(32):
            wread(st + 2)
            for u in range(4):
                d = v(96 + 4 * u, 4)
                A(f"v_mfma_f32_16x16x32_bf16 {d}, {v(16 + 16 * (st % 3) + 4 * u, 4)}, {v(Q + 4 * st, 4)}, {d}")
        for P in range(2):
            for k in range(4):
                A(f"v_cvt_pk_bf16_f32 v{16 + 4 * P + k}, v{96 + 8 * P + 2 * k}, v{97 + 8 * P + 2 * k}")
            A(f"buffer_store_dwordx4 {v(16 + 4 * P, 4)}, v113, {OUT}, {sT[1]} offen offset:{64 * P}")

    def build(self):
        A = self.A
        self.prologue()
        self.issue_first_loads()
        self.issue_aux_loads()
        self.consts_p1()
        self.stage_x()
        self.consts_p2()
        self.consts_table()
        self.stamp()
        self.p1()
        self.stamp()
        self.signal(0)
        self.maybe_stop("p1")
        self.prep_x()
        self.stage_wsp(0, R2)
        self.aux_jobs()
        self.poll_all(0)
        self.stamp()
        l = self.lab("bump")
        A("s_cmp_lg_u32 s2, 0")
        A(f"s_cbranch_scc1 {l}")
        A.cond_begin()
        A(f"v_mov_b32 {vP}, {sNONCE}")
        A(f"v_mov_b32 {vPA}, 0")
        A(f"buffer_store_dword {vP}, {vPA}, {WS}, 0 offen sc1")
        A.label(l)
        A.cond_end()
        self.p2()
        self.stamp()
        self.signal(1)
        self.maybe_stop("p2")
        self.extract_wsp(0, R2, 84)
        self.stage_wsp(1, R2)
        self.extract_wsp(1, R2, 84)
        self.poll_all(1)
        self.stamp()
        self.p3a()
        self.gemm1()
        self.z2_out()
        self.stamp()
        self.signal(3)
        self.maybe_stop("z2")
        self.stage_wsp(2, R1)
        self.stage_wsp(3, R2)
        self.p4_prep()
        self.extract_wsp(2, R1, 84)
        self.extract_wsp(3, R2, 84)
        self.poll_column(3)
        self.stamp()
        self.p4()
        self.stamp()
        self.signal(4)
        self.maybe_stop("v")
        self.wout_dma()
        self.poll_cluster(4)
        self.stamp()
        self.p5()
        A.label("L_finish")
        if self.diag:
            A("s_waitcnt vmcnt(0)")
            self.stamp()
            A(f"s_lshl_b32 {sT[0]}, s2, 9")
            A(f"s_lshl_b32 {sT[1]}, {sW}, 7")
            A(f"s_add_u32 {sT[0]}, {sT[0]}, {sT[1]}")
            A(f"s_add_u32 {sT[0]}, {sT[0]}, {WS_DBG}")
            A(f"v_mov_b32 {vPA}, 0")
            A("s_mov_b64 exec, 1")
            for k in range(self.nstamp):
                A(f"v_mov_b32 {vP}, s{sSTAMP + k}")
                A(f"buffer_store_dword {vP}, {vPA}, {WS}, {sT[0]} offen offset:{4 * k}")
        A.label("L_exit")
        A("s_endpgm")
        A.label("L_code_end")
        head = open("cdna_kernels/" + NAME + ".s.ref").read().split("; @launch")[0]
        txt = head + f"; @launch grid=(256,1,1) block=(256,1,1) lds={LDS_BYTES}\n"
        txt += '.amdgcn_target "amdgcn-amd-amdhsa--gfx950"\n.text\n'
        txt += f".globl {NAME}_kernel\n.p2align 8\n.type {NAME}_kernel,@function\n{NAME}_kernel:\n"
        txt += A.text()
        txt += f""".section .rodata,"a"
.p2align 6
.amdhsa_kernel {NAME}_kernel
  .amdhsa_next_free_vgpr 512
  .amdhsa_next_free_sgpr 96
  .amdhsa_accum_offset 256
  .amdhsa_group_segment_fixed_size 0
  .amdhsa_kernarg_size 88
  .amdhsa_user_sgpr_count 2
  .amdhsa_user_sgpr_kernarg_segment_ptr 1
  .amdhsa_system_sgpr_workgroup_id_x 1
.end_amdhsa_kernel
"""
        return txt


if __name__ == "__main__":
    import argparse
    ap = argparse.ArgumentParser()
    ap.add_argument("-o", default="cdna_kernels/" + NAME + ".s")
    ap.add_argument("--diag", action="store_true")
    ap.add_argument("--stop", default=None)
    args = ap.parse_args()
    g = Gen(diag=args.diag, stop=args.stop)
    t = g.build()
    open(args.o, "w").write(t)
    print("wrote", args.o, len(t), "bytes; nop states inserted:", g.A.nops)
```
